```python
import torch

def _softmax(x, axis=-1):
    return torch.softmax(x, dim=axis)
def _gelu(x):
    return torch.nn.functional.gelu(x, approximate="tanh")
def _silu(x):
    return torch.nn.functional.silu(x)
def _sigmoid(x):
    return torch.sigmoid(x)
def _layernorm(x, axis=-1, eps=1e-5):
    m = x.mean(dim=axis, keepdim=True)
    v = x.var(dim=axis, keepdim=True, unbiased=False)
    return (x - m) / torch.sqrt(v + eps)
def _scatter_add(tgt, idx, src, axis=0):
    return tgt.clone().index_add_(axis, idx, src)
def _segment_sum(src, seg, n):
    out = torch.zeros((n,) + src.shape[1:], dtype=src.dtype)
    return out.index_add_(0, seg, src)
def _pad(x, pw):
    flat = tuple(v for pair in reversed(pw) for v in pair)
    return torch.nn.functional.pad(x, flat)

kernel_name = 'gated_mix__linear_kernel_hedgehog__glu_gated_geglu__prompt'

def setup_inputs():

    _w = (lambda a: (lambda t: t.to(torch.bfloat16) if t.is_floating_point() else t)(torch.as_tensor(a)))
    def _A_setup():
        B, S, D, H = 1, 2048, 448, 16
        Dh = D // H
        return {
            "x": _w((lambda *s: torch.randn(*s, dtype=torch.bfloat16) * 0.05)(B, S, D)),
            "wqkv": _w((lambda *s: torch.randn(*s, dtype=torch.bfloat16) * 0.8)(D, 3 * D)),
            "w_phi": _w((lambda *s: torch.randn(*s, dtype=torch.bfloat16) * 0.8)(H, Dh, Dh) * (Dh ** -0.5)),
            "wo": _w((lambda *s: torch.randn(*s, dtype=torch.bfloat16) * 0.05)(D, D)),
        }
    _A_in = _A_setup()

    def _B_setup():
        B, S, Dm, Df = 1, 2048, 448, 1792
        return {
            "x": _w((lambda *s: torch.randn(*s, dtype=torch.bfloat16) * 0.05)(B, S, Dm)),
            "w_gate": _w((lambda *s: torch.randn(*s, dtype=torch.bfloat16) * 1.6)(Dm, Df) * (Dm ** -0.5)),
            "w_up": _w((lambda *s: torch.randn(*s, dtype=torch.bfloat16) * 1.6)(Dm, Df) * (Dm ** -0.5)),
            "w_down": _w((lambda *s: torch.randn(*s, dtype=torch.bfloat16) * 1.6)(Df, Dm) * (Df ** -0.5)),
        }
    _B_in = _B_setup()

    return {
        "A_x": _A_in["x"],
        "A_wqkv": _A_in["wqkv"],
        "A_w_phi": _A_in["w_phi"],
        "A_wo": _A_in["wo"],
        "B_x": _B_in["x"],
        "B_w_gate": _B_in["w_gate"],
        "B_w_up": _B_in["w_up"],
        "B_w_down": _B_in["w_down"],
        "gate_w": _w((lambda *s: torch.randn(*s, dtype=torch.bfloat16) * 0.05)(448) * 16.0),
    }

def reference(A_x, A_wqkv, A_w_phi, A_wo, B_x, B_w_gate, B_w_up, B_w_down, gate_w):
    def _A_ref(x, wqkv, w_phi, wo):
        B, S, D = x.shape
        H = 16; Dh = D // H
        qkv = (lambda x, *d: x.permute(*d))((x @ wqkv).reshape(B, S, 3, H, Dh), 2, 0, 3, 1, 4)
        q, k, v = qkv[0], qkv[1], qkv[2]
        pq = torch.einsum("bhsd,hdf->bhsf", q, w_phi)
        pk = torch.einsum("bhsd,hdf->bhsf", k, w_phi)
        phi_q = torch.concatenate([_softmax(pq, axis=-1), _softmax(-pq, axis=-1)], axis=-1)
        phi_k = torch.concatenate([_softmax(pk, axis=-1), _softmax(-pk, axis=-1)], axis=-1)
        kv = torch.einsum("bhsf,bhsd->bhfd", phi_k, v)
        z  = torch.einsum("bhsf->bhf", phi_k)
        num = torch.einsum("bhqf,bhfd->bhqd", phi_q, kv)
        den = torch.einsum("bhqf,bhf->bhq", phi_q, z)[..., None] + 1e-6
        o = num / den
        return (lambda x, *d: x.permute(*d))(o, 0, 2, 1, 3).reshape(B, S, D) @ wo

    def _B_ref(x, w_gate, w_up, w_down):
        g = torch.einsum("bsd,df->bsf", x, w_gate)
        u = torch.einsum("bsd,df->bsf", x, w_up)
        h = _gelu(g) * u
        return torch.einsum("bsf,fd->bsd", h, w_down)

    x = A_x
    g = _sigmoid((x * gate_w).sum(-1, keepdims=True))
    a = _A_ref(x, A_wqkv, A_w_phi, A_wo)
    b = _B_ref(x, B_w_gate, B_w_up, B_w_down)
    return g * a + (1 - g) * b
```

```python
import re


def vr(lo, n=1):
    return f"v{lo}" if n == 1 else f"v[{lo}:{lo + n - 1}]"


def sr(lo, n=1):
    return f"s{lo}" if n == 1 else f"s[{lo}:{lo + n - 1}]"


_REG = re.compile(r"^-?\|?(v|s|a)(?:(\d+)|\[(\d+):(\d+)\])\|?$")


def regs_of(tok):
    tok = str(tok).strip()
    if tok in ("vcc",):
        return {("s", 106), ("s", 107)}
    if tok == "vcc_lo":
        return {("s", 106)}
    if tok == "exec":
        return {("s", 126), ("s", 127)}
    if tok == "m0":
        return {("s", 124)}
    m = _REG.match(tok)
    if not m:
        return set()
    f = m.group(1)
    if m.group(2) is not None:
        return {(f, int(m.group(2)))}
    return {(f, i) for i in range(int(m.group(3)), int(m.group(4)) + 1)}


TRANS = ("v_exp_f32", "v_log_f32", "v_rcp_f32", "v_rsq_f32", "v_sqrt_f32", "v_sin_f32", "v_cos_f32")
RMW = ("v_fmac_f32", "v_dot2c_f32_bf16")


class Ins:
    __slots__ = ("op", "args", "mods", "kind", "rd", "wr", "tag", "cond", "passes", "comment", "srcc")

    def __init__(self, op, args=(), mods="", kind="other", rd=(), wr=(), tag=None, cond=False, passes=0, comment=None):
        self.op, self.args, self.mods, self.kind = op, list(args), mods, kind
        self.rd, self.wr, self.tag, self.cond, self.passes = set(rd), set(wr), tag, cond, passes
        self.comment = comment
        self.srcc = set()

    def text(self):
        if self.kind == "label":
            return f"{self.op}:"
        if self.kind == "raw":
            return self.op
        s = "    " + self.op
        if self.args:
            s += " " + ", ".join(str(a) for a in self.args)
        if self.mods:
            s += " " + self.mods
        if self.comment:
            s += "    ; " + self.comment
        return s


def _u(*toks):
    s = set()
    for t in toks:
        s |= regs_of(t)
    return s


def valu(op, dst, *src, mods=""):
    base = op.replace("_e64", "").replace("_e32", "")
    rd = _u(*src)
    wr = _u(dst)
    if base in RMW:
        rd |= wr
    if base.startswith("v_cndmask") and len(src) == 2:
        rd |= regs_of("vcc")
    if base.startswith("v_permlane"):
        rd |= wr
        wr |= _u(src[0])
    kind = "trans" if base in TRANS else "valu"
    if base.startswith("v_permlane"):
        kind = "perm"
    if base in ("v_readfirstlane_b32", "v_readlane_b32"):
        kind = "rdlane"
    return Ins(op, (dst,) + src, mods, kind, rd, wr)


def mfma(op, d, a, b, c):
    passes = {"v_mfma_f32_32x32x16_bf16": 8, "v_mfma_f32_16x16x32_bf16": 4, "v_mfma_f32_4x4x4_16b_bf16": 2}[op]
    i = Ins(op, (d, a, b, c), "", "mfma", _u(a, b, c), _u(d), passes=passes)
    i.srcc = _u(c)
    return i


def mfma32(d, a, b, c=None):
    return mfma("v_mfma_f32_32x32x16_bf16", vr(d, 16), vr(a, 4), vr(b, 4), vr(d, 16) if c is None else c)


def salu(op, *args, nodst=False):
    if nodst:
        return Ins(op, args, "", "salu", _u(*args), ())
    return Ins(op, args, "", "salu", _u(*args[1:]), _u(args[0]))


def ds_read(op, dst, addr, offset=0):
    assert 0 <= offset < 65536, offset
    return Ins(op, (dst, addr), f"offset:{offset}" if offset else "", "ds", _u(addr), _u(dst))


def ds_write(op, addr, data, offset=0):
    assert 0 <= offset < 65536, offset
    return Ins(op, (addr, data), f"offset:{offset}" if offset else "", "dsw", _u(addr, data), ())


def buf_load(op, dst, voff, srd, soff="0", offset=0, flags="", tag=None, cond=False, partial=False):
    assert 0 <= offset < 4096
    m = ("offen" if voff != "off" else "") + (f" offset:{offset}" if offset else "") + (" " + flags if flags else "")
    rd = _u(voff, srd, soff)
    if partial:
        rd |= _u(dst)
    return Ins(op, (dst, voff, srd, soff), m.strip(), "vmem", rd, _u(dst), tag=tag, cond=cond)


def buf_dma(voff, srd, soff="0", offset=0, flags="", tag=None, op="buffer_load_dwordx4"):
    assert 0 <= offset < 4096
    m = "offen" + (f" offset:{offset}" if offset else "") + (" " + flags if flags else "") + " lds"
    return Ins(op, (voff, srd, soff), m, "dma", _u(voff, srd, soff, "m0"), (), tag=tag)


def buf_store(op, data, voff, srd, soff="0", offset=0, flags="", tag=None, cond=False):
    assert 0 <= offset < 4096
    m = ("offen" if voff != "off" else "") + (f" offset:{offset}" if offset else "") + (" " + flags if flags else "")
    i = Ins(op, (data, voff, srd, soff), m.strip(), "vst", _u(data, voff, srd, soff), (), tag=tag, cond=cond)
    i.srcc = _u(data)
    return i


def label(name):
    return Ins(name, kind="label")


def raw(text):
    return Ins(text, kind="raw")


def nop(n):
    return Ins("s_nop", (n,), "", "nop")


def barrier():
    return Ins("s_barrier", (), "", "barrier")


def wait_tag(*tags):
    return Ins("WAITTAG", tags, "", "waittag")


def wait_lgkm0():
    return Ins("WAITLGKM0", (), "", "waitlgkm0")


def wait_vm0():
    return Ins("WAITVM0", (), "", "waitvm0")


def waitcnt(vm=None, lgkm=None):
    parts = []
    if vm is not None:
        parts.append(f"vmcnt({vm})")
    if lgkm is not None:
        parts.append(f"lgkmcnt({lgkm})")
    return Ins("s_waitcnt", (" ".join(parts),), "", "wait")


def branch(op, target):
    return Ins(op, (target,), "", "branch")


def insert_waits(code):
    out = []
    vq = []
    lq = []
    for ins in code:
        k = ins.kind
        if k == "waittag":
            idx = -1
            for i, (_, t, _w) in enumerate(vq):
                if t in ins.args:
                    idx = i
            if idx >= 0:
                n = sum(e[2] for e in vq[idx + 1:])
                assert n <= 63
                out.append(waitcnt(vm=n))
                vq = vq[idx + 1:]
            continue
        if k == "waitlgkm0":
            if lq:
                out.append(waitcnt(lgkm=0))
                lq = []
            continue
        if k == "waitvm0":
            out.append(waitcnt(vm=0))
            vq = []
            continue
        if k == "wait":
            m = re.search(r"vmcnt\((\d+)\)", ins.args[0])
            if m:
                n = int(m.group(1))
                while sum(e[2] for e in vq) > n:
                    vq = vq[1:]
                if n == 0:
                    vq = []
            m = re.search(r"lgkmcnt\((\d+)\)", ins.args[0])
            if m:
                n = int(m.group(1))
                lq = lq[len(lq) - n:] if n < len(lq) else lq
                if n == 0:
                    lq = []
            out.append(ins)
            continue
        touched = ins.rd | ins.wr
        vi = -1
        for i, (d, _, _w) in enumerate(vq):
            if d & touched:
                vi = i
        li = -1
        for i, d in enumerate(lq):
            if d & touched:
                li = i
        vm = lg = None
        if vi >= 0:
            vm = sum(e[2] for e in vq[vi + 1:])
            vq = vq[vi + 1:]
        if li >= 0:
            lg = len(lq) - 1 - li
            lq = lq[li + 1:]
        if vm is not None or lg is not None:
            if vm is not None:
                vm = min(vm, 63)
            if lg is not None:
                lg = min(lg, 15)
            w = waitcnt(vm, lg)
            w.cond = ins.cond
            out.append(w)
        if k in ("vmem", "dma", "vst"):
            assert len(vq) < 60, "too many vmem ops in flight"
            vq.append((set(ins.wr), ins.tag, 0 if ins.cond else 1))
        if k in ("ds", "dsw"):
            if len(lq) >= 15:
                out.append(waitcnt(lgkm=14))
                lq = lq[len(lq) - 14:]
            lq.append(set(ins.wr))
        out.append(ins)
    return out


def _states(ins):
    if ins.kind == "nop":
        return int(ins.args[0]) + 1
    if ins.kind in ("label", "raw"):
        return 0
    return 1


VALUK = ("valu", "trans", "perm", "rdlane")
MEMK = ("vmem", "dma", "vst", "ds", "dsw")


def _need(p, c):
    need = 0
    pv = {r for r in p.wr if r[0] == "v"}
    ps = {r for r in p.wr if r[0] == "s"}
    if p.kind in VALUK:
        if c.kind == "mfma" and pv & c.rd:
            need = max(need, 2)
        if c.kind == "perm" and pv & c.rd:
            need = max(need, 2)
        if c.kind == "rdlane" and pv & c.rd:
            need = max(need, 1)
        if "dpp" in c.op and pv & c.rd:
            need = max(need, 2)
        if p.kind == "trans" and c.kind in VALUK + ("mfma",) + MEMK and pv & c.rd:
            need = max(need, 1)
        if ps:
            if c.kind in ("vmem", "dma", "vst") and ps & c.rd:
                need = max(need, 5)
            if c.kind in VALUK and ps & c.rd:
                need = max(need, 4 if c.kind == "rdlane" else 2)
            if c.kind == "salu" and ps & c.rd:
                need = max(need, 1)
            if {("s", 126), ("s", 127)} & ps:
                need = max(need, 5)
    if p.kind == "salu":
        if ("s", 124) in ps and c.kind == "dma":
            need = max(need, 1)
    if p.kind == "mfma":
        P = p.passes
        t_c = {2: 4, 4: 6, 8: 10, 16: 18}[P]
        t_ab = {2: 5, 4: 8, 8: 12, 16: 20}[P]
        t_war = {2: 1, 4: 3, 8: 7, 16: 15}[P]
        if c.kind == "mfma":
            ab = _u(c.args[1], c.args[2])
            if pv & ab:
                need = max(need, t_ab)
            if pv & c.srcc:
                if c.args[3] == p.args[0] and c.passes == P:
                    need = max(need, 2 if P == 2 else 0)
                else:
                    need = max(need, t_c)
            elif pv & c.wr:
                need = max(need, t_ab)
        elif c.kind in VALUK + MEMK:
            if pv & (c.rd | c.wr):
                need = max(need, t_ab)
            if c.kind in VALUK and p.srcc & c.wr:
                need = max(need, t_war)
    if p.kind in ("vst", "dsw"):
        data = p.srcc if p.kind == "vst" else _u(p.args[1])
        if len(data) >= 2 and data & c.wr:
            need = max(need, 2)
    return need


def insert_hazards(code):
    out = []
    for ins in code:
        if ins.kind in ("label", "raw", "nop", "wait", "barrier", "branch"):
            out.append(ins)
            continue
        dist = 0
        pad = 0
        for p in reversed(out):
            if dist >= 20:
                break
            n = _need(p, ins)
            if n > dist:
                pad = max(pad, n - dist)
            if not (p.cond and p.cond != ins.cond):
                dist += _states(p)
        while pad > 0:
            k = min(pad, 16)
            x = nop(k - 1)
            x.cond = ins.cond
            out.append(x)
            pad -= k
        out.append(ins)
    return out


def interleave(main, side, start=0, end=None, per=None):
    pos = [i for i, x in enumerate(main) if x.kind == "mfma" and x.passes == 8]
    if end is None:
        end = len(pos)
    pos = pos[start:end]
    assert pos
    cost = [2 if x.kind in ("trans", "perm") else 1 for x in side]
    total = sum(cost)
    n = len(pos)
    budget = total / n if per is None else per
    ins_at = {}
    j = 0
    acc = 0.0
    for k, p in enumerate(pos):
        acc += budget
        lst = []
        while j < len(side) and (acc >= cost[j] - 1e-9 or k == n - 1):
            acc -= cost[j]
            lst.append(side[j])
            j += 1
        ins_at[p] = lst
    out = []
    for i, x in enumerate(main):
        out.append(x)
        if i in ins_at:
            out.extend(ins_at[i])
    return out


def condblock(code, name):
    for i in code:
        i.cond = name
    return code


def finalize(code):
    return insert_hazards(insert_waits(code))


def render(code):
    return "\n".join(i.text() for i in code) + "\n"
```

```python
import math
import struct
import sys
from asmlib import *

NAME = "gated_mix__linear_kernel_hedgehog__glu_gated_geglu__prompt"
SLOT = 16384
NSLOT = 9
MISC = NSLOT * SLOT
RT_STRIDE = 144 * 1024
KVP_OFF = 0xA00000
KVF_OFF = 0xC00000


def f32(x):
    return "0x%08x" % struct.unpack("<I", struct.pack("<f", x))[0]


LOG2E = math.log2(math.e)
GK1 = -2.0 * math.sqrt(2.0 / math.pi) * LOG2E
GK2 = GK1 * 0.044715

sWAVE, sRB, sP, sTYPE, sT = "s3", "s4", "s5", "s6", "s7"
SRD_X, SRD_QKV, SRD_GLU, SRD_WS, SRD_DBG, SRD_PHI, SRD_GW = (sr(8, 4), sr(12, 4), sr(16, 4), sr(20, 4),
                                                              sr(24, 4), sr(28, 4), sr(44, 4))
sCX = [f"s{32 + i}" for i in range(7)]
sOFF, sW2048, sW1024, sSTB, sT2 = "s39", "s40", "s41", "s42", "s43"
sL, sK2, sPH, sT3 = "s48", "s49", "s50", "s51"
sMHI, sM28 = sr(52, 2), sr(54, 2)
sCOL64, sCOL32, sG = "s56", "s57", "s58"
sKS64, sKS32 = "s59", "s60"
KARG = 64


def kptr(i):
    return KARG + 2 * i


vLANE, vXC, vWA, vWB, vXA, vGA, vST = "v1", "v2", "v3", "v4", "v5", "v6", "v7"
vDX0, vDX1, vDA0, vDA1, vDB0, vDB1 = "v8", "v9", "v10", "v11", "v12", "v13"
vCG, vGATE = "v14", "v15"
T = 16
WB = 48
A0, A1 = 64, 96
XF = 128
WPHI = 240
GACC = A1 + 16
WBUFS = [48, 52, 56, 60, 248, 252]
PHI_LDS = MISC + 1024
vRC1, vRC2, vRC3 = "v44", "v45", "v46"
vK1 = "v47"
vDC0 = "v43"
vHF16 = "v42"
vMSK = "v41"


def V(n, c=1):
    return vr(n, c)


def srd(base, ptr, nbytes):
    return [salu("s_mov_b32", f"s{base}", f"s{ptr}"), salu("s_mov_b32", f"s{base + 1}", f"s{ptr + 1}"),
            salu("s_mov_b32", f"s{base + 2}", hex(nbytes)), salu("s_mov_b32", f"s{base + 3}", "0x20000")]


def lane_fields(c, t0):
    c += [valu("v_lshrrev_b32", V(t0), 5, vLANE), valu("v_bfe_u32", V(t0 + 1), vLANE, 4, 1),
          valu("v_bfe_u32", V(t0 + 2), vLANE, 2, 2), valu("v_and_b32", V(t0 + 3), 3, vLANE)]


def prologue_common(rotate=True):
    c = []
    c += [salu("s_cmp_ge_u32", "s2", 256, nodst=True), branch("s_cbranch_scc1", "L_end1")]
    c += [raw(f"    s_load_dwordx16 s[{KARG}:{KARG + 15}], s[0:1], 0"),
          raw(f"    s_load_dwordx8 s[{KARG + 16}:{KARG + 23}], s[0:1], 64")]
    c += [valu("v_and_b32", vLANE, 63, "v0"), valu("v_lshrrev_b32", V(T), 6, "v0"),
          valu("v_readfirstlane_b32", sWAVE, V(T))]
    c += [salu("s_and_b32", sT, "s2", 1), salu("s_lshl_b32", sRB, sT, 3), salu("s_lshr_b32", sT, "s2", 5),
          salu("s_add_u32", sRB, sRB, sT),
          salu("s_bfe_u32", sT, "s2", hex((2 << 16) | 1)),
          salu("s_bfe_u32", sT2, "s2", hex((1 << 16) | 3)),
          salu("s_lshl_b32", sP, sT, 1), salu("s_add_u32", sP, sP, sT2),
          salu("s_bfe_u32", sTYPE, "s2", hex((1 << 16) | 4))]
    c += [salu("s_mul_i32", sT, sT, 448),
          salu("s_mul_i32", sT3, sT2, 320), salu("s_add_u32", sCOL64, sT, sT3),
          salu("s_lshl_b32", sT3, sT2, 5), salu("s_add_u32", sCOL32, sT, sT3), salu("s_add_u32", sCOL32, sCOL32, 192),
          salu("s_lshl_b32", sT3, sT2, 7), salu("s_add_u32", sT3, sT3, sT), salu("s_add_u32", sT3, sT3, 128),
          salu("s_cmp_eq_u32", sTYPE, 0, nodst=True), salu("s_cselect_b32", sCOL64, sT3, sCOL64)]
    if rotate:
        c += [salu("s_lshr_b32", sT, "s2", 3), salu("s_mul_i32", sT3, sT, 37), salu("s_lshr_b32", sT3, sT3, 8),
              salu("s_mul_i32", sT3, sT3, 7), salu("s_sub_u32", sT, sT, sT3)]
    else:
        c += [salu("s_mov_b32", sT, 0)]
    c += [salu("s_lshl_b32", sCX[0], sT, 7)]
    for i in range(1, 7):
        c += [salu("s_add_u32", sCX[i], sCX[i - 1], 128), salu("s_cmp_ge_u32", sCX[i], 896, nodst=True),
              salu("s_cselect_b32", sCX[i], 0, sCX[i])]
    c += [salu("s_lshl_b32", sW2048, sWAVE, 11), salu("s_lshl_b32", sW1024, sWAVE, 10),
          salu("s_lshr_b32", sG, sWAVE, 2)]
    t = T
    c += [valu("v_lshrrev_b32", V(t), 3, vLANE),
          valu("v_lshrrev_b32", V(t + 1), 4, vLANE),
          valu("v_and_b32", V(t + 2), 7, vLANE),
          valu("v_xor_b32", V(t + 2), V(t + 2), V(t + 1)),
          salu("s_lshl_b32", sT, sRB, 7), salu("s_lshl_b32", sT3, sWAVE, 4), salu("s_add_u32", sT, sT, sT3),
          valu("v_add_u32", V(t), sT, V(t)),
          valu("v_mul_u32_u24", V(t), 896, V(t)),
          valu("v_lshl_add_u32", vDX0, V(t + 2), 4, V(t)),
          valu("v_xor_b32", V(t + 2), 4, V(t + 2)),
          valu("v_lshl_add_u32", vDX1, V(t + 2), 4, V(t)),
          valu("v_add_u32", vDX1, 8 * 896 - 1024, vDX1)]
    c += [raw("    s_waitcnt lgkmcnt(0)")]
    c += stamp("rstart", True) + stamp("start")
    c += srd(8, kptr(0), 2048 * 448 * 2)
    return c


def setup_rest(c):
    c += srd(12, kptr(1), 448 * 1344 * 2)
    c += [salu("s_cmp_eq_u32", sG, 0, nodst=True),
          salu("s_cselect_b32", "s16", f"s{kptr(5)}", f"s{kptr(6)}"),
          salu("s_cselect_b32", "s17", f"s{kptr(5) + 1}", f"s{kptr(6) + 1}"),
          salu("s_mov_b32", "s18", hex(448 * 1792 * 2)), salu("s_mov_b32", "s19", "0x20000")]
    c += srd(44, kptr(8), 896)
    c += srd(28, kptr(2), 16 * 28 * 28 * 2)


def setup_late(c):
    c += srd(20, kptr(11), 0x10000000)
    c += srd(24, kptr(10), 256)
    c += [salu("s_mov_b32", sL, f32(LOG2E)), salu("s_mov_b32", sK2, f32(GK2)), valu("v_mov_b32", vK1, f32(GK1))]
    c += [salu("s_mov_b32", "s52", 0), salu("s_mov_b32", "s53", -1),
          salu("s_mov_b32", "s54", hex(1 << 28)), salu("s_mov_b32", "s55", hex(1 << 28))]
    t = T
    c += [valu("v_and_b32", V(t), 31, vLANE), valu("v_lshrrev_b32", V(t + 1), 5, vLANE),
          valu("v_bfe_u32", V(t + 2), vLANE, 1, 3), valu("v_xor_b32", V(t + 2), V(t + 2), V(t + 1)),
          valu("v_lshlrev_b32", V(t + 2), 4, V(t + 2)), valu("v_lshl_add_u32", vXC, V(t), 7, V(t + 2)),
          salu("s_and_b32", sT, sWAVE, 3), salu("s_lshl_b32", sT3, sT, 12), valu("v_add_u32", vXC, sT3, vXC),
          valu("v_lshlrev_b32", vHF16, 4, V(t + 1)),
          valu("v_add_u32", vHF16, MISC, vHF16),
          salu("s_mul_i32", sT3, sT, RT_STRIDE), valu("v_lshlrev_b32", vST, 4, vLANE), valu("v_add_u32", vST, sT3, vST),
          salu("s_mul_i32", sSTB, sRB, 4 * RT_STRIDE),
          valu("v_cndmask_b32_e64", vMSK, 1.0, 0, sMHI)]
    c += [salu("s_lshl_b32", sKS64, sCOL64, 6), salu("s_add_u32", sKS64, sKS64, sSTB),
          salu("s_add_u32", sKS64, sKS64, 32 * 1024), salu("s_lshl_b32", sT3, sG, 11), salu("s_add_u32", sKS64, sKS64, sT3),
          salu("s_lshl_b32", sKS32, sCOL32, 6), salu("s_add_u32", sKS32, sKS32, sSTB),
          salu("s_add_u32", sKS32, sKS32, 32 * 1024), salu("s_lshl_b32", sT3, sG, 10), salu("s_add_u32", sKS32, sKS32, sT3)]


def dconst_glu64(c, d0, d1):
    t = T
    c += [valu("v_lshrrev_b32", V(t), 3, vLANE), salu("s_and_b32", sT, sWAVE, 3), salu("s_lshl_b32", sT, sT, 4),
          valu("v_add_u32", V(t), sT, V(t)), valu("v_mul_u32_u24", V(t), 3584, V(t)),
          valu("v_bfe_u32", V(t + 1), vLANE, 1, 2), valu("v_bfe_u32", V(t + 2), vLANE, 4, 1),
          valu("v_xor_b32", V(t + 1), V(t + 1), V(t + 2)), salu("s_lshl_b32", sT, sG, 1),
          valu("v_xor_b32", V(t + 1), sT, V(t + 1)),
          valu("v_lshl_add_u32", V(t), V(t + 1), 5, V(t)),
          valu("v_and_b32", V(t + 1), 1, vLANE), valu("v_lshl_add_u32", V(t), V(t + 1), 4, V(t)),
          salu("s_lshl_b32", sT, sCOL64, 1), valu("v_add_u32", d0, sT, V(t)),
          valu("v_add_u32", d1, 8 * 3584 - 1024, d0)]


def dconst_glu32(c, d0):
    t = T
    c += [valu("v_lshrrev_b32", V(t), 2, vLANE), salu("s_and_b32", sT, sWAVE, 3), salu("s_lshl_b32", sT, sT, 4),
          valu("v_add_u32", V(t), sT, V(t)), valu("v_mul_u32_u24", V(t), 3584, V(t)),
          valu("v_and_b32", V(t + 1), 3, vLANE), salu("s_lshl_b32", sT, sG, 1), valu("v_xor_b32", V(t + 1), sT, V(t + 1)),
          valu("v_lshl_add_u32", V(t), V(t + 1), 4, V(t)),
          salu("s_lshl_b32", sT, sCOL32, 1), valu("v_add_u32", d0, sT, V(t))]


def dconst_kv(c, d0, d1):
    t = T
    c += [valu("v_lshrrev_b32", V(t), 4, vLANE),
          valu("v_lshlrev_b32", V(t + 1), 2, V(t)), valu("v_sub_u32", V(t + 1), vLANE, V(t + 1)),
          valu("v_and_b32", V(t + 1), 15, V(t + 1)),
          salu("s_lshl_b32", sT, sWAVE, 3), valu("v_add_u32", V(t), sT, V(t)), valu("v_mul_u32_u24", V(t), 2688, V(t)),
          valu("v_and_b32", V(t + 2), 7, V(t + 1)), valu("v_min_u32", V(t + 2), 6, V(t + 2)),
          valu("v_lshl_add_u32", V(t), V(t + 2), 4, V(t)),
          valu("v_lshrrev_b32", V(t + 1), 3, V(t + 1)), valu("v_mul_u32_u24", V(t + 1), 896, V(t + 1)),
          salu("s_mul_i32", sT, sP, 112), salu("s_add_u32", sT, sT, 896),
          valu("v_add3_u32", d0, V(t), V(t + 1), sT),
          valu("v_add_u32", d1, 4 * 2688 - 1024, d0)]


def dconst_q(c, d0):
    t = T
    c += [valu("v_lshrrev_b32", V(t), 3, vLANE), salu("s_lshl_b32", sT, sWAVE, 3), valu("v_add_u32", V(t), sT, V(t)),
          valu("v_mul_u32_u24", V(t), 2688, V(t)),
          valu("v_bfe_u32", V(t + 1), vLANE, 4, 1), valu("v_lshlrev_b32", V(t + 1), 2, V(t + 1)),
          valu("v_and_b32", V(t + 2), 7, vLANE), valu("v_xor_b32", V(t + 1), V(t + 1), V(t + 2)),
          valu("v_min_u32", V(t + 1), 6, V(t + 1)), valu("v_lshl_add_u32", V(t), V(t + 1), 4, V(t)),
          salu("s_mul_i32", sT, sP, 112), valu("v_add_u32", d0, sT, V(t))]


def rconst(c, kind, d):
    t = T
    lane_fields(c, t)
    hf, grp, r, cc = V(t), V(t + 1), V(t + 2), V(t + 3)
    a, b = V(t + 4), V(t + 5)
    c += [valu("v_lshl_add_u32", a, hf, 3, r)]
    if kind == "g64":
        c += [valu("v_lshlrev_b32", a, 7, a), valu("v_lshl_add_u32", a, grp, 13, a),
              valu("v_lshrrev_b32", b, 1, r), valu("v_lshl_add_u32", b, grp, 1, b), salu("s_lshl_b32", sT, sG, 1),
              valu("v_xor_b32", b, sT, b), valu("v_lshl_add_u32", a, b, 5, a), valu("v_lshl_add_u32", d, cc, 3, a)]
    elif kind == "g32":
        c += [valu("v_lshlrev_b32", a, 6, a), valu("v_lshl_add_u32", a, grp, 12, a),
              valu("v_xor_b32", b, sG, grp), valu("v_lshl_add_u32", a, b, 5, a), valu("v_lshl_add_u32", d, cc, 3, a)]
    elif kind == "kv":
        c += [valu("v_lshlrev_b32", a, 8, a), valu("v_lshl_add_u32", b, grp, 2, cc), valu("v_lshlrev_b32", b, 3, b),
              salu("s_mul_i32", sT, sG, 56), valu("v_add_u32", b, sT, b), valu("v_lshl_add_u32", b, r, 6, b),
              valu("v_and_b32", b, 255, b), valu("v_add_u32", d, a, b)]
    elif kind == "q":
        c += [valu("v_lshlrev_b32", a, 7, a), valu("v_lshl_add_u32", b, grp, 2, cc), valu("v_lshlrev_b32", b, 3, b),
              salu("s_mul_i32", sT, sG, 56), valu("v_add_u32", b, sT, b), valu("v_lshrrev_b32", r, 1, r),
              valu("v_lshlrev_b32", r, 6, r), valu("v_xor_b32", b, b, r), valu("v_add_u32", d, a, b)]


def small_dma():
    t = T + 8
    c = [valu("v_lshlrev_b32", V(t), 4, vLANE), salu("s_mov_b32", "m0", MISC),
         buf_dma(V(t), SRD_GW, "0", 0, tag="w0"),
         salu("s_and_b32", sT, sWAVE, 3), salu("s_lshl_b32", sT, sT, 10), salu("s_add_u32", "m0", sT, PHI_LDS),
         salu("s_mul_i32", sT3, sP, 3136), salu("s_add_u32", sT, sT, sT3),
         buf_dma(V(t), SRD_PHI, sT, 0, tag="w0")]
    return c


def wphi_frags():
    t = T
    c = []
    lane_fields(c, t)
    hf, grp, r, cc = V(t), V(t + 1), V(t + 2), V(t + 3)
    a, b = V(t + 4), V(t + 5)
    c += [valu("v_lshl_add_u32", a, hf, 2, r), valu("v_mul_u32_u24", a, 56, a),
          valu("v_lshl_add_u32", b, grp, 2, cc), valu("v_min_u32", b, 6, b), valu("v_lshl_add_u32", a, b, 3, a),
          salu("s_mul_i32", sT, sG, 1568), salu("s_add_u32", sT, sT, PHI_LDS), valu("v_add_u32", a, sT, a)]
    for i in range(4):
        c.append(ds_read("ds_read_b64_tr_b16", V(WPHI + 2 * i, 2), a, i * 8 * 56))
    c += [valu("v_mov_b32", b, 0), valu("v_cndmask_b32_e64", V(WPHI + 6), V(WPHI + 6), b, sMHI),
          valu("v_cndmask_b32_e64", V(WPHI + 7), V(WPHI + 7), b, sMHI)]
    return c


def dma_x(s, slot, tag):
    return [[salu("s_add_u32", "m0", sW2048, slot * SLOT), buf_dma(vDX0, SRD_X, sCX[s], 0, tag=tag)],
            [buf_dma(vDX1, SRD_X, sCX[s], 1024, tag=tag)]]


def dma_full(s, slot, tag, srd_, d0, d1, mul, add=0):
    c = [salu("s_add_u32", "m0", sW2048, slot * SLOT), salu("s_mul_i32", sOFF, sCX[s], mul)]
    if add:
        c.append(salu("s_add_u32", sOFF, sOFF, add))
    return [c + [buf_dma(d0, srd_, sOFF, 0, tag=tag)], [buf_dma(d1, srd_, sOFF, 1024, tag=tag)]]


def dma_half(u, slot, tag, srd_, d0, mul):
    c = []
    for b in range(2):
        s = 2 * u + b
        if s > 6:
            break
        c.append([salu("s_add_u32", "m0", sW1024, slot * SLOT + b * 8192), salu("s_mul_i32", sOFF, sCX[s], mul),
                  buf_dma(d0, srd_, sOFF, 0, tag=tag)])
    return c


def xhalf(op, dst, src, ta, tb):
    return [valu("v_mov_b32", ta, src), valu("v_mov_b32", tb, src), valu("v_permlane32_swap_b32", ta, tb),
            valu(op, dst, ta, tb)]


def gate_final():
    a, b = V(T + 22), V(T + 23)
    c = xhalf("v_add_f32", vCG, vCG, a, b)
    c += [valu("v_mul_f32", a, sL, vCG), valu("v_exp_f32", b, a), valu("v_exp_f32_e64", a, "-" + a),
          valu("v_add_f32", b, 1.0, b), valu("v_add_f32", a, 1.0, a),
          valu("v_min_f32", vCG, f32(1e30), b), valu("v_rcp_f32", vGATE, a)]
    return c


def gelu_tile(acc, pk, soff, imm, tag):
    t = T
    c = []
    G = [V(acc + i) for i in range(8)]
    U = [V(acc + 8 + i) for i in range(8)]
    X = [V(t + i) for i in range(8)]
    c += [valu("v_mul_f32", X[i], G[i], G[i]) for i in range(8)]
    c += [valu("v_fma_f32", X[i], X[i], sK2, vK1) for i in range(8)]
    c += [valu("v_mul_f32", X[i], X[i], G[i]) for i in range(8)]
    for i in range(8):
        c += [valu("v_exp_f32", X[i], X[i]), valu("v_mul_f32", U[i], G[i], U[i])]
    c += [valu("v_fma_f32", X[i], X[i], vCG, vCG) for i in range(8)]
    for i in range(8):
        c.append(valu("v_rcp_f32", X[i], X[i]))
        if i >= 2:
            c.append(valu("v_mul_f32", U[i - 2], U[i - 2], X[i - 2]))
    c += [valu("v_mul_f32", U[i], U[i], X[i]) for i in (6, 7)]
    c += [valu("v_cvt_pk_bf16_f32", V(pk + i), U[2 * i], U[2 * i + 1]) for i in range(4)]
    c.append(buf_store("buffer_store_dwordx4", V(pk, 4), vST, SRD_WS, soff, imm, "sc1", tag=tag))
    return c


def softmax2(P, N, outp, outn, st):
    p = [V(P + i) for i in range(16)]
    n = [V(N + i) for i in range(16)]
    mx, mn, a, b, sp, sn, a2, b2 = [V(st + i) for i in range(8)]
    c = [valu("v_max3_f32", mx, p[0], p[1], p[2]), valu("v_min3_f32", mn, p[0], p[1], p[2])]
    for i in range(3, 15, 2):
        c += [valu("v_max3_f32", mx, mx, p[i], p[i + 1]), valu("v_min3_f32", mn, mn, p[i], p[i + 1])]
    c += [valu("v_max_f32", mx, mx, p[15]), valu("v_min_f32", mn, mn, p[15])]
    c += [valu("v_mov_b32", a, mx), valu("v_mov_b32", a2, mn), valu("v_mov_b32", b, mx), valu("v_mov_b32", b2, mn),
          valu("v_permlane32_swap_b32", a, b), valu("v_permlane32_swap_b32", a2, b2),
          valu("v_max_f32", mx, a, b), valu("v_min_f32", mn, a2, b2),
          valu("v_mul_f32", mx, sL, mx), valu("v_mul_f32", mn, sL, mn)]
    for i in range(16):
        c += [valu("v_fma_f32", n[i], p[i], "-" + sL, mn), valu("v_fma_f32", p[i], p[i], sL, "-" + mx)]
    for i in range(16):
        c += [valu("v_exp_f32", n[i], n[i]), valu("v_exp_f32", p[i], p[i])]
        if i == 2:
            c += [valu("v_add_f32", sn, n[0], n[1]), valu("v_add_f32", sp, p[0], p[1])]
        elif 3 <= i <= 12:
            c += [valu("v_add_f32", sn, sn, n[i - 1]), valu("v_add_f32", sp, sp, p[i - 1])]
        elif i == 14:
            c += [valu("v_add_f32", a2, n[12], n[13]), valu("v_add_f32", a, p[12], p[13])]
        elif i == 15:
            c += [valu("v_add_f32", a2, a2, n[14]), valu("v_add_f32", a, a, p[14])]
    c += [valu("v_add_f32", a2, a2, n[15]), valu("v_add_f32", a, a, p[15]),
          valu("v_fma_f32", sn, a2, vMSK, sn), valu("v_fma_f32", sp, a, vMSK, sp)]
    c += [valu("v_mov_b32", a, sp), valu("v_mov_b32", a2, sn), valu("v_mov_b32", b, sp), valu("v_mov_b32", b2, sn),
          valu("v_permlane32_swap_b32", a, b), valu("v_permlane32_swap_b32", a2, b2),
          valu("v_add_f32", sp, a, b), valu("v_add_f32", sn, a2, b2),
          valu("v_rcp_f32", sp, sp), valu("v_rcp_f32", sn, sn)]
    for i in range(16):
        c += [valu("v_mul_f32", p[i], p[i], sp)]
    for i in range(16):
        c += [valu("v_mul_f32", n[i], n[i], sn)]
        if i % 2 == 1:
            c.append(valu("v_cvt_pk_bf16_f32", V(outp + i // 2), p[i - 1], p[i]))
    for i in range(8):
        c.append(valu("v_cvt_pk_bf16_f32", V(outn + i), n[2 * i], n[2 * i + 1]))
    return c


def phi_mfma(acc, pk):
    c = [valu("v_cvt_pk_bf16_f32", V(pk + i), V(acc + 2 * i), V(acc + 2 * i + 1)) for i in range(8)]
    c += [mfma32(acc, WPHI, pk, "0"), mfma32(acc, WPHI + 4, pk + 4)]
    return c


STAMP_OFF = 0x1000000
STAMPS = {"on": False, "names": {}}


def stamp(name, real=False, kern="1"):
    if not STAMPS["on"]:
        return []
    names = STAMPS["names"].setdefault(kern, [])
    if name not in names:
        names.append(name)
    i = names.index(name)
    return [raw("    s_memrealtime s[90:91]" if real else "    s_memtime s[90:91]"), waitcnt(lgkm=0),
            raw(f"    v_writelane_b32 v0, s90, {i}")]


def stamp_flush(kern="1"):
    if not STAMPS["on"]:
        return []
    c = stamp("end", kern=kern) + stamp("rend", True, kern=kern)
    c += [salu("s_lshl_b32", "s90", "s2", 3), salu("s_add_u32", "s90", "s90", sWAVE), salu("s_lshl_b32", "s90", "s90", 8),
          salu("s_add_u32", "s90", "s90", STAMP_OFF + (0x100000 if kern == "2" else 0)),
          valu("v_lshlrev_b32", "v255", 2, vLANE), nop(2),
          buf_store("buffer_store_dword", "v0", "v255", SRD_WS, "s90", 0)]
    return c


def poll(name, vtmp, soff, imm, target):
    return [salu("s_mov_b32", sT3, 0), label(name),
            buf_load("buffer_load_dword", vtmp, "off", SRD_DBG, soff, imm, "sc1", cond=True),
            salu("s_add_u32", sT3, sT3, 1), salu("s_cmp_gt_u32", sT3, 100000, nodst=True),
            branch("s_cbranch_scc1", name + "x"),
            waitcnt(vm=0), valu("v_readfirstlane_b32", sT, vtmp), nop(1),
            salu("s_cmp_lt_u32", sT, target, nodst=True), branch("s_cbranch_scc1", name),
            label(name + "x"), waitcnt(vm=0)]


class Job:
    def __init__(self, stage, pre, reads, mm, post=()):
        self.stage, self.pre, self.reads, self.mm, self.post = stage, pre, reads, mm, list(post)


def phase1(typ, cfg):
    PD = cfg.get("PD", 3)
    BPOS = cfg.get("BPOS", 3)
    c = []
    setup_rest(c)
    if typ == "A":
        dconst_kv(c, vDA0, vDA1)
        passes = ["kv", "g64", "g32"]
    else:
        dconst_glu64(c, vDA0, vDA1)
        passes = ["g64", "g64b", "q"]
    units = []
    stage_units = []
    for s in range(7):
        units.append((f"x{s}", lambda slot, tag, s=s: dma_x(s, slot, tag)))
        if typ == "A":
            units.append((f"w{s}", lambda slot, tag, s=s: dma_full(s, slot, tag, SRD_QKV, vDA0, vDA1, 1344)))
        else:
            units.append((f"w{s}", lambda slot, tag, s=s: dma_full(s, slot, tag, SRD_GLU, vDA0, vDA1, 1792)))
        stage_units.append([f"x{s}", f"w{s}"])
    for s in range(7):
        if typ == "A":
            units.append((f"w{7 + s}", lambda slot, tag, s=s: dma_full(s, slot, tag, SRD_GLU, vDB0, vDB1, 1792)))
        else:
            units.append((f"w{7 + s}", lambda slot, tag, s=s: dma_full(s, slot, tag, SRD_GLU, vDA0, vDA1, 1792, 128)))
        stage_units.append([f"w{7 + s}"])
    for u in range(4):
        if typ == "A":
            units.append((f"w{14 + u}", lambda slot, tag, u=u: dma_half(u, slot, tag, SRD_GLU, vDC0, 1792)))
        else:
            units.append((f"w{14 + u}", lambda slot, tag, u=u: dma_half(u, slot, tag, SRD_QKV, vDC0, 1344)))
        stage_units.append([f"w{14 + u}"])
    nst = len(stage_units)
    free = list(range(NSLOT))
    slot_of = {}
    nxt = 0
    issue_at = {}
    scratch = None

    def take(key):
        nonlocal nxt
        lst = []
        while free and nxt < len(units):
            nm = units[nxt][0]
            slot_of[nm] = free.pop(0)
            lst.append(nxt)
            nxt += 1
        issue_at[key] = lst

    take(-1)
    for s in range(nst):
        if s >= 1:
            rel = [slot_of[u] for u in stage_units[s - 1]]
            if typ == "A" and s == 7:
                scratch = rel
            else:
                free.extend(rel)
        take(s)
    assert nxt == len(units)

    def unit_groups(key):
        out = []
        for i in issue_at[key]:
            nm, em = units[i]
            out += em(slot_of[nm], nm)
        return out

    vmq = unit_groups(-1)
    PRE = cfg.get("PRE", 6)
    late = []
    setup_late(late)
    if typ == "A":
        dconst_glu64(late, vDB0, vDB1)
        dconst_glu32(late, vDC0)
        rconst(late, "kv", vRC1); rconst(late, "g64", vRC2); rconst(late, "g32", vRC3)
    else:
        dconst_q(late, vDC0)
        rconst(late, "g64", vRC1); rconst(late, "q", vRC3)
    for k in range(0, PRE, 2):
        for g in vmq[:4]:
            c += g
        vmq = vmq[4:]
        if k == 0:
            c += small_dma()
            c += late
        c += [barrier()]

    jobs = []
    nb = 0

    def trpair(addr, off, jstep):
        nonlocal nb
        b = WBUFS[nb % (PD + 1)]
        nb += 1
        return b, [ds_read("ds_read_b64_tr_b16", V(b, 2), addr, off),
                   ds_read("ds_read_b64_tr_b16", V(b + 2, 2), addr, off + jstep)]

    for st in range(nst):
        pi = 0 if st < 7 else (1 if st < 14 else 2)
        kind = passes[pi]
        wslot = slot_of[stage_units[st][-1]] * SLOT
        rc = {0: vRC1, 1: vRC2 if typ == "A" else vRC1, 2: vRC3}[pi]
        acc = A1 if pi == 1 else A0
        if pi < 2:
            s = st - 7 * pi
            tstep, jstep, bx = (4096, 1024, 128) if kind == "kv" else (2048, 512, 32)
            for t in range(4):
                xf = XF + 4 * (4 * s + t)
                for ab in range(2):
                    pre = []
                    if t == 0 and ab == 0:
                        pre += [valu("v_or_b32", vWA, wslot, rc), valu("v_xor_b32", vWB, wslot | bx, rc)]
                        if pi == 0:
                            pre += [valu("v_add_u32", vGA, sCX[s], vHF16)]
                    reads = []
                    post = []
                    if pi == 0 and ab == 0:
                        xs = slot_of[stage_units[st][0]] * SLOT
                        reads += [valu("v_xor_b32", vXA, xs | (t << 5), vXC), ds_read("ds_read_b128", V(xf, 4), vXA)]
                    b, rd = trpair(vWA if ab == 0 else vWB, t * tstep, jstep)
                    reads += rd
                    if pi == 0 and ab == 1 and not cfg.get("NOGATE"):
                        gb = A1 + 4 * ((4 * s + t) % 4)
                        reads += [ds_read("ds_read_b128", V(gb, 4), vGA, t * 32)]
                        first = (s == 0 and t == 0)
                        for hh in range(0 if cfg.get("NOSMALL") else 2):
                            d = V(GACC + 4 * hh, 4)
                            post.append(mfma("v_mfma_f32_4x4x4_16b_bf16", d, V(gb + 2 * hh, 2), V(xf + 2 * hh, 2),
                                             "0" if first else d))
                    d = acc + 16 * ab
                    cin = "0" if (s == 0 and t == 0) else None
                    if kind == "kv" and ab == 1:
                        mm = mfma32(d, xf, b, cin)
                    else:
                        mm = mfma32(d, b, xf, cin)
                    jobs.append(Job(st, pre, reads, mm, post))
        else:
            u = st - 14
            tstep, jstep = (1024, 256) if kind == "g32" else (2048, 512)
            for bb in range(2):
                s = 2 * u + bb
                if s > 6:
                    break
                for t in range(4):
                    xf = XF + 4 * (4 * s + t)
                    pre = []
                    if t == 0 and bb == 0:
                        pre += [valu("v_or_b32", vWA, wslot, rc)]
                    b, rd = trpair(vWA, bb * 8192 + t * tstep, jstep)
                    mm = mfma32(acc, b, xf, "0" if (s == 0 and t == 0) else None)
                    jobs.append(Job(st, pre, rd, mm))
    first_job = {}
    for i, j in enumerate(jobs):
        first_job.setdefault(j.stage, i)

    pre_bar, post_bar = {}, {}
    side = {}

    def add_side(j0, j1, code):
        side.setdefault("l", []).append((j0, j1, code))

    add_side(first_job[2], first_job[3], wphi_frags())
    jobs[first_job[7] - 1].post.append(valu("v_add_f32", vCG, V(GACC), V(GACC + 4)))
    if typ == "B":
        g1 = gate_final() + gelu_tile(A0, T + 8, sKS64, 0, "h") + gelu_tile(A0 + 16, T + 12, sKS64, 1024, "h")
        add_side(first_job[7] + 1, first_job[7] + 41, g1)
        g2 = [salu("s_add_u32", sKS64, sKS64, 4096)] + gelu_tile(A1, T + 8, sKS64, 0, "h") + \
            gelu_tile(A1 + 16, T + 12, sKS64, 1024, "h")
        add_side(first_job[14] + 1, len(jobs), g2)
    else:
        KA, VA = A0, A0 + 16
        t = T
        k1 = gate_final() + phi_mfma(KA, t)
        k1 += [valu("v_cvt_pk_bf16_f32", V(t + 8 + i), V(VA + 2 * i), V(VA + 2 * i + 1)) for i in range(8)]
        k1 += [valu("v_mov_b32", V(t + 24), "0x3f803f80")]
        k1 += [valu("v_cndmask_b32_e64", V(t + 8 + i), V(t + 8 + i), V(t + 24), sM28) for i in range(8)]
        k1 += [valu("v_lshlrev_b32", V(t + 24), 4, vLANE), salu("s_add_u32", sT, sW2048, MISC),
               valu("v_add_u32", V(t + 24), sT, V(t + 24))]
        add_side(first_job[7] + 1, first_job[7] + 7, k1)
        k2 = [ds_write("ds_write_b128", V(t + 24), V(t + 8, 4), 0), ds_write("ds_write_b128", V(t + 24), V(t + 12, 4), 1024)]
        k2 += softmax2(KA, VA, t, t + 8, t + 16)
        a, b, d = V(t + 16), V(t + 17), V(t + 18)
        k2 += [salu("s_mul_i32", sPH, sG, (scratch[1] - scratch[0]) * SLOT),
               salu("s_add_u32", sPH, sPH, scratch[0] * SLOT),
               valu("v_and_b32", a, 5, vLANE), valu("v_bfe_u32", b, vLANE, 3, 1), valu("v_lshl_or_b32", a, b, 1, a),
               valu("v_bfe_u32", b, vLANE, 1, 1), valu("v_lshl_or_b32", a, b, 3, a),
               valu("v_lshrrev_b32", b, 5, vLANE), valu("v_xor_b32", a, a, b), valu("v_lshlrev_b32", a, 3, a),
               valu("v_and_b32", b, "0x3f80", vXC), valu("v_add3_u32", a, a, b, sPH)]
        for sg in range(2):
            for q in range(4):
                dd = V(t + 18 + (q & 1))
                k2 += [valu("v_xor_b32", dd, (sg * 8 + 2 * q) << 3, a),
                       ds_write("ds_write_b64", dd, V(t + 8 * sg + 2 * q, 2))]
        KS = cfg.get("KSPAN", 4)
        add_side(first_job[7] + 7, first_job[7 + KS] + BPOS, k2)
        pre_bar.setdefault(7 + KS + 1, []).append(wait_lgkm0())
        k3 = []
        lane_fields(k3, t + 16)
        hf, grp, r, cc = V(t + 16), V(t + 17), V(t + 18), V(t + 19)
        a, b, r0, r1, rv = V(t + 20), V(t + 21), V(t + 22), V(t + 23), V(t + 24)
        k3 += [valu("v_lshl_add_u32", a, grp, 2, cc), salu("s_and_b32", sT, sWAVE, 1), salu("s_lshl_b32", sT, sT, 3),
               valu("v_or_b32", a, sT, a),
               valu("v_and_b32", b, 1, r), valu("v_lshl_or_b32", b, hf, 2, b), valu("v_lshrrev_b32", r0, 1, r),
               valu("v_lshl_or_b32", b, r0, 3, b), valu("v_xor_b32", a, a, b), valu("v_lshlrev_b32", a, 3, a),
               valu("v_lshl_add_u32", b, hf, 2, r), valu("v_lshl_add_u32", a, b, 7, a), valu("v_add_u32", r0, sPH, a),
               valu("v_xor_b32", r1, 16, r0),
               valu("v_lshlrev_b32", rv, 4, vLANE), salu("s_lshl_b32", sT, sG, 13), salu("s_add_u32", sT, sT, MISC),
               valu("v_add_u32", rv, sT, rv)]

        def kvreads(kk):
            fa, fb = t + 4 * (kk % 2), t + 8 + 4 * (kk % 2)
            return [ds_read("ds_read_b64_tr_b16", V(fa, 2), r0, kk * 2048),
                    ds_read("ds_read_b64_tr_b16", V(fa + 2, 2), r1, kk * 2048 + 1024),
                    ds_read("ds_read_b128", V(fb, 4), rv, kk * 1024)]

        k3 += kvreads(0)
        for kk in range(8):
            if kk + 1 < 8:
                k3 += kvreads(kk + 1)
            k3.append(mfma32(KA, t + 4 * (kk % 2), t + 8 + 4 * (kk % 2), "0" if kk == 0 else None))
        k3 += [salu("s_lshl_b32", sT, sP, 4), salu("s_add_u32", sT, sT, sRB), salu("s_lshl_b32", sT, sT, 14),
               salu("s_lshl_b32", sT3, sG, 13), salu("s_add_u32", sT, sT, sT3), salu("s_and_b32", sT3, sWAVE, 1),
               salu("s_lshl_b32", sT3, sT3, 12), salu("s_add_u32", sT, sT, sT3), salu("s_add_u32", sPH, sT, KVP_OFF),
               valu("v_lshlrev_b32", rv, 4, vLANE)]
        add_side(first_job[7 + KS] + BPOS, first_job[7 + KS + 1] + 6, k3)
        st_blk = [salu("s_bitcmp1_b32", sWAVE, 1, nodst=True), branch("s_cbranch_scc1", "L_skipkv")]
        st_blk += condblock([buf_store("buffer_store_dwordx4", V(KA + 4 * q, 4), rv, SRD_WS, sPH, q * 1024, "sc1",
                                       tag="kvp", cond=True) for q in range(4)], "kvst")
        st_blk += [label("L_skipkv")]
        side.setdefault("at", {})[first_job[7 + KS + 2]] = st_blk
        assert 7 + KS + 2 < 14
        sig = 7 + KS + 2 + cfg.get("SIGLAG", 2)
        pre_bar.setdefault(sig, []).append(wait_tag("kvp"))
        blk = [salu("s_cmp_lg_u32", sWAVE, 0, nodst=True), branch("s_cbranch_scc1", "L_skipsig")]
        blk += condblock([salu("s_mov_b64", "exec", 1), valu("v_mov_b32", V(t + 24), 1), salu("s_lshl_b32", sT, sP, 5),
                          buf_store("buffer_atomic_add", V(t + 24), "off", SRD_DBG, sT, 0, "sc1", cond=True),
                          salu("s_mov_b64", "exec", -1)], "sig")
        blk += [label("L_skipsig")]
        post_bar.setdefault(sig, []).extend(blk)
        g2 = gelu_tile(A1, T + 8, sKS64, 0, "h") + gelu_tile(A1 + 16, T + 12, sKS64, 1024, "h")
        add_side(first_job[14] + 1, len(jobs), g2)

    after = {i: [] for i in range(len(jobs))}
    for j0, j1, code in side.get("l", []):
        cost = [2 if x.kind in ("trans", "perm") else (0.5 if x.kind == "salu" else 1) for x in code]
        budget = sum(cost) / (j1 - j0)
        acc_ = 0.0
        k = 0
        for j in range(j0, j1):
            acc_ += budget
            while k < len(code) and (acc_ >= cost[k] - 1e-9 or j == j1 - 1):
                acc_ -= cost[k]
                after[j].append(code[k])
                k += 1

    c += stamp("setup")
    c += [wait_tag("x0", "w0"), barrier()]
    c += stamp("b0")
    for i in range(PD):
        c += jobs[i].pre + jobs[i].reads
    last_vm = -10
    if cfg.get("NODMA"):
        vmq = []
        unit_groups = lambda key: []
    if cfg.get("NOSIDE"):
        after = {i: [] for i in range(len(jobs))}
    GAP = cfg.get("GAP", 2)
    for i, j in enumerate(jobs):
        st = j.stage
        if i == first_job[st] + BPOS and st + 1 < nst:
            while vmq and vmq[0][-1].tag in stage_units[st + 1]:
                c += vmq.pop(0)
            c += pre_bar.get(st + 1, [])
            c += [wait_tag(*stage_units[st + 1])] + ([] if cfg.get("NOBAR") else [barrier()])
            if cfg.get("STAMP", 0) == 1 or (st + 1) in (7, 14):
                c += stamp(f"b{st + 1}")
            c += post_bar.get(st + 1, [])
            vmq += unit_groups(st)
        c += side.get("at", {}).get(i, [])
        if i + PD < len(jobs):
            n = jobs[i + PD]
            assert n.stage == st or i >= first_job[st] + BPOS
            c += n.pre + n.reads
        c.append(j.mm)
        c += j.post
        if vmq and i - last_vm >= GAP:
            c += vmq.pop(0)
            last_vm = i
        c += after[i]
    assert not vmq

    c += stamp("mainend")
    if typ == "A":
        c += gelu_tile(A0, T + 8, sKS32, 0, "h")
    else:
        t = T
        QA = A0
        c += phi_mfma(QA, t)
        c += softmax2(QA, A0 + 16, t, t + 8, t + 16)
        c += stamp("smax")
        c += [wait_vm0(), wait_lgkm0()]
        c += stamp("vm0")
        R = XF
        blk = [salu("s_lshl_b32", sT2, sP, 5)]
        blk += poll("L_poll1", V(R), sT2, 0, 16)
        blk += stamp("poll1")
        blk += [salu("s_lshl_b32", sT, sP, 18), salu("s_lshl_b32", sT3, sRB, 10), salu("s_add_u32", sT, sT, sT3),
                salu("s_add_u32", sT, sT, KVP_OFF), valu("v_lshlrev_b32", V(R + 64), 4, vLANE)]
        for i in range(16):
            blk += [buf_load("buffer_load_dwordx4", V(R + 4 * i, 4), V(R + 64), SRD_WS, sT, 0, "sc1", cond=True),
                    salu("s_add_u32", sT, sT, 16384)]
        blk += [waitcnt(vm=0)]
        for step in (8, 4, 2, 1):
            for i in range(step):
                for e in range(4):
                    blk.append(valu("v_add_f32", V(R + 4 * i + e), V(R + 4 * i + e), V(R + 4 * (i + step) + e)))
        blk += [valu("v_cvt_pk_bf16_f32", V(R + 4), V(R), V(R + 1)), valu("v_cvt_pk_bf16_f32", V(R + 5), V(R + 2), V(R + 3))]
        blk += [salu("s_and_b32", sT, sRB, 3), salu("s_cmp_eq_u32", sT, 3, nodst=True),
                salu("s_cselect_b64", "vcc", sMHI, 0), valu("v_mov_b32", V(R + 6), 0),
                valu("v_cndmask_b32", V(R + 4), V(R + 4), V(R + 6)), valu("v_cndmask_b32", V(R + 5), V(R + 5), V(R + 6))]
        blk += [salu("s_lshl_b32", sT, sP, 13), salu("s_lshr_b32", sT3, sRB, 1), salu("s_lshl_b32", sT3, sT3, 10),
                salu("s_add_u32", sT, sT, sT3), salu("s_and_b32", sT3, sRB, 1), salu("s_lshl_b32", sT3, sT3, 3),
                salu("s_add_u32", sT, sT, sT3), salu("s_add_u32", sT, sT, KVF_OFF),
                buf_store("buffer_store_dwordx2", V(R + 4, 2), V(R + 64), SRD_WS, sT, 0, "sc1", cond=True),
                waitcnt(vm=0),
                salu("s_mov_b64", "exec", 1), valu("v_mov_b32", V(R), 1),
                buf_store("buffer_atomic_add", V(R), "off", SRD_DBG, sT2, 16, "sc1", cond=True),
                salu("s_mov_b64", "exec", -1)]
        blk += stamp("red")
        blk += poll("L_poll2", V(R + 1), sT2, 16, 16)
        blk += stamp("poll2")
        c += [salu("s_cmp_lg_u32", sWAVE, 0, nodst=True), branch("s_cbranch_scc1", "L_skipred")]
        c += condblock(blk, "red")
        c += [label("L_skipred"), barrier()]
        c += [salu("s_lshl_b32", sT, sP, 13), salu("s_lshl_b32", sT3, sG, 12), salu("s_add_u32", sT, sT, sT3),
              salu("s_add_u32", sT, sT, KVF_OFF), valu("v_lshlrev_b32", V(R + 64), 4, vLANE)]
        for i in range(4):
            c.append(buf_load("buffer_load_dwordx4", V(R + 4 * i, 4), V(R + 64), SRD_WS, sT, i * 1024, "sc1"))
        for i in range(4):
            c.append(mfma32(QA, R + 4 * i, t + 4 * i, "0" if i == 0 else None))
        a, b = V(t + 16), V(t + 17)
        c += [valu("v_mov_b32", a, V(QA + 12)), valu("v_mov_b32", b, V(QA + 12)), valu("v_permlane32_swap_b32", a, b),
              valu("v_add_f32", b, f32(1e-6), b), valu("v_rcp_f32", b, b), valu("v_mul_f32", b, b, vGATE),
              valu("v_mul_f32", a, b, vMSK)]
        for i in range(16):
            c.append(valu("v_mul_f32", V(QA + i), V(QA + i), b if i < 12 else a))
        for i in range(8):
            c.append(valu("v_cvt_pk_bf16_f32", V(t + i), V(QA + 2 * i), V(QA + 2 * i + 1)))
        c += [salu("s_lshl_b32", sT, sP, 12), salu("s_lshl_b32", sT3, sG, 11), salu("s_add_u32", sT, sT, sT3),
              salu("s_add_u32", sT, sT, sSTB)]
        c += [buf_store("buffer_store_dwordx4", V(t + 4 * i, 4), vST, SRD_WS, sT, i * 1024, "sc1") for i in range(2)]
    c += stamp_flush()
    c += [raw("    s_endpgm")]
    return c


def kernel2(cfg):
    c = []
    sR, sC, sKQ, sRH = "s4", "s5", "s6", "s58"
    SRD_WO, SRD_WD, SRD_OUT = sr(8, 4), sr(12, 4), sr(16, 4)
    sAB = "s42"
    c += [salu("s_lshr_b32", sT, "s2", 3), salu("s_cmp_ge_u32", sT, 28, nodst=True), branch("s_cbranch_scc1", "L_end2")]
    c += [raw(f"    s_load_dwordx16 s[{KARG}:{KARG + 15}], s[0:1], 0"),
          raw(f"    s_load_dwordx8 s[{KARG + 16}:{KARG + 23}], s[0:1], 64")]
    c += [valu("v_and_b32", vLANE, 63, "v0"), valu("v_lshrrev_b32", V(T), 6, "v0"),
          valu("v_readfirstlane_b32", sWAVE, V(T))]
    c += [salu("s_mul_i32", sT3, sT, 37), salu("s_lshr_b32", sT3, sT3, 8),
          salu("s_mul_i32", sC, sT3, 7), salu("s_sub_u32", sC, sT, sC),
          salu("s_and_b32", sR, "s2", 7), salu("s_lshl_b32", sR, sR, 2), salu("s_add_u32", sR, sR, sT3),
          salu("s_and_b32", sKQ, sWAVE, 3), salu("s_lshr_b32", sRH, sWAVE, 2), salu("s_lshl_b32", sW2048, sWAVE, 11)]
    vDD0, vDD1, vDO0, vDO1, vAO, vRA, vRB = "v2", "v3", "v4", "v5", "v6", "v7", "v8"
    t = T
    c += [valu("v_lshrrev_b32", V(t), 3, vLANE), valu("v_mul_u32_u24", V(t), 896, V(t)),
          valu("v_bfe_u32", V(t + 1), vLANE, 4, 1), valu("v_lshlrev_b32", V(t + 1), 2, V(t + 1)),
          valu("v_and_b32", V(t + 2), 7, vLANE), valu("v_xor_b32", V(t + 1), V(t + 1), V(t + 2)),
          valu("v_lshl_add_u32", V(t), V(t + 1), 4, V(t)),
          salu("s_lshl_b32", sT, sC, 7), salu("s_mul_i32", sT3, sWAVE, 16 * 896), salu("s_add_u32", sT3, sT3, sT),
          valu("v_add_u32", vDD0, sT3, V(t)), valu("v_add_u32", vDD1, 8 * 896 - 1024, vDD0),
          salu("s_lshr_b32", sT3, sWAVE, 1), salu("s_mul_i32", sT3, sT3, 28 * 896), salu("s_add_u32", sT, sT, sT3),
          salu("s_and_b32", sT3, sWAVE, 1), salu("s_mul_i32", sT3, sT3, 16 * 896), salu("s_add_u32", sT, sT, sT3),
          valu("v_add_u32", vDO0, sT, V(t)), valu("v_add_u32", vDO1, 8 * 896 - 1024, vDO0)]
    c += [salu("s_lshl_b32", sT, sR, 1), salu("s_add_u32", sT, sT, sRH), salu("s_mul_i32", sT, sT, RT_STRIDE),
          salu("s_lshl_b32", sT3, sKQ, 11), salu("s_add_u32", sT, sT, sT3),
          valu("v_lshlrev_b32", vAO, 4, vLANE), valu("v_add_u32", vAO, sT, vAO)]
    c += [raw("    s_waitcnt lgkmcnt(0)")]
    c += stamp("rstart", True, "2") + stamp("start", kern="2")
    c += srd(12, kptr(7), 1792 * 448 * 2) + srd(20, kptr(11), 0x10000000) + srd(8, kptr(3), 448 * 448 * 2)
    ORD = list(range(4, 18)) + list(range(4))
    AF = 128
    ACC = 64
    WF = 32

    def issue(i):
        U = ORD[i]
        slot = i % NSLOT
        o = [salu("s_add_u32", "m0", sW2048, slot * SLOT)]
        if U >= 4:
            o += [salu("s_mov_b32", sOFF, (U - 4) * 128 * 896),
                  buf_dma(vDD0, SRD_WD, sOFF, 0, tag=f"w{i}"), buf_dma(vDD1, SRD_WD, sOFF, 1024, tag=f"w{i}")]
        else:
            o += [salu("s_mov_b32", sOFF, U * 112 * 896),
                  buf_dma(vDO0, SRD_WO, sOFF, 0, tag=f"w{i}"), buf_dma(vDO1, SRD_WO, sOFF, 1024, tag=f"w{i}")]
        o += [salu("s_mov_b32", sAB, U * 8192)]
        for b in range(2):
            o.append(buf_load("buffer_load_dwordx4", V(AF + 8 * slot + 4 * b, 4), vAO, SRD_WS, sAB, b * 1024))
        return o

    D2 = cfg.get("D2", 4)
    for i in range(D2):
        c += issue(i)
        c += [barrier()]
    c += srd(16, kptr(9), 2048 * 448 * 2)
    lane_fields(c, t)
    hf, grp, r, cc = V(t), V(t + 1), V(t + 2), V(t + 3)
    a, b = V(t + 4), V(t + 5)
    vRC = "v9"
    c += [valu("v_lshl_add_u32", a, hf, 2, r), valu("v_lshlrev_b32", a, 7, a), valu("v_lshrrev_b32", b, 1, r),
          valu("v_lshl_add_u32", a, b, 6, a), valu("v_lshl_add_u32", b, grp, 2, cc), valu("v_lshl_add_u32", a, b, 3, a),
          salu("s_lshl_b32", sT, sKQ, 12), valu("v_add_u32", vRC, sT, a)]
    for i in range(18):
        slot = i % NSLOT
        c += [wait_tag(f"w{i}"), barrier()]
        if cfg.get("STAMP", 0) == 1 or i in (0, 9):
            c += stamp(f"b{i}", kern="2")
        nx = issue(i + D2) if i + D2 < 18 else []
        vm = [k for k, x in enumerate(nx) if x.kind in ("dma", "vmem")]
        parts = [nx[:vm[0] + 1], nx[vm[0] + 1:vm[1] + 1], nx[vm[1] + 1:vm[2] + 1], nx[vm[2] + 1:]] if nx else [[]] * 4
        c += [valu("v_or_b32", vRA, slot * SLOT, vRC), valu("v_xor_b32", vRB, slot * SLOT | 64, vRC)]
        wf = WF + 16 * (i % 2)
        for bb in range(2):
            for ct in range(2):
                f = wf + 8 * bb + 4 * ct
                ad = vRA if ct == 0 else vRB
                c += [ds_read("ds_read_b64_tr_b16", V(f, 2), ad, bb * 2048),
                      ds_read("ds_read_b64_tr_b16", V(f + 2, 2), ad, bb * 2048 + 1024)]
        c += parts[0]
        k = 1
        for bb in range(2):
            for ct in range(2):
                c.append(mfma32(ACC + 16 * ct, wf + 8 * bb + 4 * ct, AF + 8 * slot + 4 * bb,
                                "0" if (i == 0 and bb == 0) else None))
                if k < 4:
                    c += parts[k]
                    k += 1
    c += stamp("mainend", kern="2")
    c += [barrier()]
    c += [valu("v_and_b32", a, 31, vLANE), valu("v_and_b32", b, 7, vLANE), valu("v_lshrrev_b32", hf, 5, vLANE),
          valu("v_xor_b32", b, b, hf), valu("v_lshlrev_b32", b, 4, b), valu("v_lshl_add_u32", a, a, 8, b),
          salu("s_lshl_b32", sT, sWAVE, 13), valu("v_add_u32", a, sT, a)]
    for ct in range(2):
        for q in range(4):
            d = V(t + 6 + (q & 1))
            c += [valu("v_xor_b32", d, (8 * ct + 2 * q) << 4, a), ds_write("ds_write_b128", d, V(ACC + 16 * ct + 4 * q, 4))]
    c += [valu("v_lshrrev_b32", hf, 3, vLANE), valu("v_and_b32", b, 7, vLANE), valu("v_lshlrev_b32", a, 1, b),
          valu("v_xor_b32", a, a, hf), valu("v_lshlrev_b32", a, 4, a), valu("v_lshl_add_u32", a, hf, 8, a),
          salu("s_lshl_b32", sT, sRH, 15), salu("s_lshl_b32", sT3, sKQ, 11), salu("s_add_u32", sT, sT, sT3),
          valu("v_add_u32", a, sT, a), valu("v_xor_b32", cc, 16, a)]
    c += [valu("v_mul_u32_u24", hf, 896, hf), valu("v_lshl_add_u32", hf, b, 4, hf),
          salu("s_lshl_b32", sT, sR, 6), salu("s_lshl_b32", sT3, sRH, 5), salu("s_add_u32", sT, sT, sT3),
          salu("s_lshl_b32", sT3, sKQ, 3), salu("s_add_u32", sT, sT, sT3), salu("s_mul_i32", sT, sT, 896),
          salu("s_lshl_b32", sT3, sC, 7), salu("s_add_u32", sT, sT, sT3)]
    c += [wait_lgkm0(), barrier()]
    for k in range(4):
        c += [ds_read("ds_read_b128", V(AF + 8 * k, 4), a, k * 8192), ds_read("ds_read_b128", V(AF + 8 * k + 4, 4), cc, k * 8192)]
    for e in range(8):
        c.append(valu("v_add_f32", V(AF + e), V(AF + e), V(AF + 8 + e)))
    for e in range(8):
        c.append(valu("v_add_f32", V(AF + 16 + e), V(AF + 16 + e), V(AF + 24 + e)))
    for e in range(8):
        c.append(valu("v_add_f32", V(AF + e), V(AF + e), V(AF + 16 + e)))
    for e in range(4):
        c.append(valu("v_cvt_pk_bf16_f32", V(AF + 32 + e), V(AF + 2 * e), V(AF + 2 * e + 1)))
    c.append(buf_store("buffer_store_dwordx4", V(AF + 32, 4), hf, SRD_OUT, sT, 0))
    c += stamp_flush("2")
    c += [label("L_end2"), raw("    s_endpgm")]
    return c


def kd(name, vgpr=256, sgpr=96):
    return f""".amdhsa_kernel {name}
  .amdhsa_next_free_vgpr {vgpr}
  .amdhsa_next_free_sgpr {sgpr}
  .amdhsa_accum_offset {(vgpr + 3) // 4 * 4}
  .amdhsa_group_segment_fixed_size 0
  .amdhsa_kernarg_size 96
  .amdhsa_user_sgpr_count 2
  .amdhsa_user_sgpr_kernarg_segment_ptr 1
  .amdhsa_system_sgpr_workgroup_id_x 1
.end_amdhsa_kernel
"""


def relabel(code, suffix, keep=("L_end1", "L_end2", "L_typeB")):
    for i in code:
        if i.kind == "label" and i.op not in keep:
            i.op += suffix
        if i.kind == "branch" and i.args[0] not in keep:
            i.args[0] += suffix
    return code


def main(out, cfg):
    STAMPS["on"] = bool(cfg.get("STAMP", 0))
    hdr = open("cdna_kernels/" + NAME + ".s.ref").read().split("; Override")[0]
    k1, k2 = "p1_kernel", "p2_kernel"
    s = hdr
    s += f"; @launch kernel={k1} grid=(256,1,1) block=(512,1,1) lds=163840\n"
    s += f"; @launch kernel={k2} grid=(256,1,1) block=(512,1,1) lds=163840\n"
    s += '.amdgcn_target "amdgcn-amd-amdhsa--gfx950"\n.text\n'
    pro = prologue_common(cfg.get("ROT", True))
    br = [salu("s_cmp_lg_u32", sTYPE, 0, nodst=True), branch("s_cbranch_scc1", "L_typeB")]
    a = finalize(pro + br + relabel(phase1("A", cfg), "_A"))
    b = finalize([label("L_typeB"), nop(4)] + relabel(phase1("B", cfg), "_B"))
    s += f".globl {k1}\n.p2align 8\n.type {k1},@function\n{k1}:\n"
    s += render(a) + ".p2align 6\n" + render(b) + "L_end1:\n    s_endpgm\n"
    s += f".globl {k2}\n.p2align 8\n.type {k2},@function\n{k2}:\n"
    s += render(finalize(kernel2(cfg)))
    s += '.section .rodata,"a"\n.p2align 6\n' + kd(k1) + ".p2align 6\n" + kd(k2)
    open(out, "w").write(s)
    print("wrote", out, "instr:", len(a), len(b))
    if STAMPS["on"]:
        import json
        json.dump(STAMPS["names"], open(out + ".stamps.json", "w"))


if __name__ == "__main__":
    cfg = {}
    for kv in sys.argv[2:]:
        k, v = kv.split("=")
        cfg[k] = int(v)
    main(sys.argv[1], cfg)
```
